```python
import torch

def _softmax(x, axis=-1):
    return torch.softmax(x, dim=axis)
def _gelu(x):
    return torch.nn.functional.gelu(x, approximate="tanh")
def _silu(x):
    return torch.nn.functional.silu(x)
def _sigmoid(x):
    return torch.sigmoid(x)
def _layernorm(x, axis=-1, eps=1e-5):
    m = x.mean(dim=axis, keepdim=True)
    v = x.var(dim=axis, keepdim=True, unbiased=False)
    return (x - m) / torch.sqrt(v + eps)
def _scatter_add(tgt, idx, src, axis=0):
    return tgt.clone().index_add_(axis, idx, src)
def _segment_sum(src, seg, n):
    out = torch.zeros((n,) + src.shape[1:], dtype=src.dtype)
    return out.index_add_(0, seg, src)
def _pad(x, pw):
    flat = tuple(v for pair in reversed(pw) for v in pair)
    return torch.nn.functional.pad(x, flat)

kernel_name = 'gated_mix__gqa_block_cached__swiglu_ffn__decode'

def setup_inputs():

    _w = (lambda a: (lambda t: t.to(torch.bfloat16) if t.is_floating_point() else t)(torch.as_tensor(a)))
    def _A_setup():
        B, Sq, D = 1, 1, 448
        Hq, Hkv, Sk, Dh = 16, 8, 65536, 256
        assert Hq % Hkv == 0, (Hq, Hkv)
        return {
            "x": _w((lambda *s: torch.randn(*s, dtype=torch.bfloat16) * 0.05)(B, Sq, D)),
            "k_cache": _w((lambda *s: torch.randn(*s, dtype=torch.bfloat16) * 6.4)(B, Hkv, Sk, Dh)),
            "v_cache": _w((lambda *s: torch.randn(*s, dtype=torch.bfloat16) * 0.2)(B, Hkv, Sk, Dh)),
            "wq": _w((lambda *s: torch.randn(*s, dtype=torch.bfloat16) * 6.4)(D, Hq * Dh) * (D ** -0.5)),
            "wo": _w((lambda *s: torch.randn(*s, dtype=torch.bfloat16) * 0.2)(Hq * Dh, D) * ((Hq * Dh) ** -0.5)),
        }
    _A_in = _A_setup()

    def _B_setup():
        B, S, D, F = 1, 1, 448, 1792
        return {
            "x": _w((lambda *s: torch.randn(*s, dtype=torch.bfloat16) * 0.05)(B, S, D)),
            "w_gate": _w((lambda *s: torch.randn(*s, dtype=torch.bfloat16) * 0.05)(D, F)),
            "w_up": _w((lambda *s: torch.randn(*s, dtype=torch.bfloat16) * 0.05)(D, F)),
            "w_down": _w((lambda *s: torch.randn(*s, dtype=torch.bfloat16) * 0.05)(F, D)),
        }
    _B_in = _B_setup()

    return {
        "A_x": _A_in["x"],
        "A_k_cache": _A_in["k_cache"],
        "A_v_cache": _A_in["v_cache"],
        "A_wq": _A_in["wq"],
        "A_wo": _A_in["wo"],
        "B_x": _B_in["x"],
        "B_w_gate": _B_in["w_gate"],
        "B_w_up": _B_in["w_up"],
        "B_w_down": _B_in["w_down"],
        "gate_w": _w((lambda *s: torch.randn(*s, dtype=torch.bfloat16) * 0.05)(448) * 16.0),
    }

def reference(A_x, A_k_cache, A_v_cache, A_wq, A_wo, B_x, B_w_gate, B_w_up, B_w_down, gate_w):
    def _A_ref(x, k_cache, v_cache, wq, wo):
        B, Sq, D = x.shape
        Hq, Dh = 16, 256
        Hkv = k_cache.shape[1]
        rep = Hq // Hkv
        q = (lambda x, *d: x.permute(*d))((x @ wq).reshape(B, Sq, Hq, Dh), 0, 2, 1, 3)
        k = (lambda x, n, axis: torch.repeat_interleave(x, n, dim=axis))(k_cache, rep, axis=1)
        v = (lambda x, n, axis: torch.repeat_interleave(x, n, dim=axis))(v_cache, rep, axis=1)
        scores = torch.einsum("bhqd,bhkd->bhqk", q, k) * (Dh ** -0.5)
        p = _softmax(scores, axis=-1)
        o = torch.einsum("bhqk,bhkd->bhqd", p, v)
        return (lambda x, *d: x.permute(*d))(o, 0, 2, 1, 3).reshape(B, Sq, Hq * Dh) @ wo

    def _B_ref(x, w_gate, w_up, w_down):
        g = _silu(x @ w_gate)
        u = x @ w_up
        return (g * u) @ w_down

    x = A_x
    g = _sigmoid((x * gate_w).sum(-1, keepdims=True))
    a = _A_ref(x, A_k_cache, A_v_cache, A_wq, A_wo)
    b = _B_ref(x, B_w_gate, B_w_up, B_w_down)
    return g * a + (1 - g) * b
```

```python
import sys
NAME = 'gated_mix__gqa_block_cached__swiglu_ffn__decode'
def gen(path, wbits=(12,13), tbits=(11,15,16,17,18,19,14), gbits=(20,21,22,23,24,25,26,27), infl=5, infl2=None, touch=0, early=False, r=(9,10), orc=None, hp=0, kq=False, xr=None):
    assert sorted(list(wbits)+list(tbits)+list(gbits)+list(r)) == list(range(9,28)), (wbits,tbits,gbits,r)
    L = []; A = L.append
    A(f'; @launch grid=(256,1,1) block=(256,1,1) lds=0')
    A('.amdgcn_target "amdgcn-amd-amdhsa--gfx950"')
    A('.text'); A(f'.globl {NAME}_kernel'); A('.p2align 8'); A(f'.type {NAME}_kernel,@function'); A(f'{NAME}_kernel:')
    A(f'  s_cmp_ge_u32 s2, 256'); A('  s_cbranch_scc1 L_end')
    A('  s_memrealtime s[40:41]')
    A('  s_load_dwordx4 s[4:7], s[0:1], 8')
    A('  s_load_dwordx4 s[20:23], s[0:1], 88')
    A('  v_lshrrev_b32 v1, 6, v0'); A('  s_nop 0'); A('  v_readfirstlane_b32 s3, v1')
    A('  v_and_b32 v2, 63, v0')
    A('  v_bfe_u32 v3, v2, 4, 1'); A(f'  v_lshlrev_b32 v3, {r[0]}, v3'); A('  v_bfe_u32 v5, v2, 5, 1'); A(f'  v_lshlrev_b32 v5, {r[1]}, v5'); A('  v_add_u32 v3, v3, v5')
    A('  v_and_b32 v4, 15, v2'); A('  v_lshlrev_b32 v4, 4, v4')
    if kq:
        A('  v_bfe_u32 v3, v2, 2, 1'); A(f'  v_lshlrev_b32 v3, {r[0]}, v3'); A('  v_bfe_u32 v5, v2, 3, 1'); A(f'  v_lshlrev_b32 v5, {r[1]}, v5'); A('  v_add_u32 v3, v3, v5')
        A('  v_and_b32 v4, 3, v2'); A('  v_lshlrev_b32 v4, 4, v4'); A('  v_lshrrev_b32 v5, 4, v2'); A('  v_lshl_add_u32 v4, v5, 6, v4')
    A('  v_add_u32 v1, v3, v4')
    def scatter(dst, src, bits, first=0):
        A(f'  s_mov_b32 {dst}, 0')
        for i, b in enumerate(bits):
            A(f'  s_bfe_u32 s31, {src}, {(1<<16)|(i+first):#x}'); A(f'  s_lshl_b32 s31, s31, {b}'); A(f'  s_or_b32 {dst}, {dst}, s31')
    scatter('s30', 's3', wbits); scatter('s32', 's2', gbits)
    A('  s_or_b32 s30, s30, s32'); A('  v_add_u32 v1, s30, v1')
    A('  s_waitcnt lgkmcnt(0)')
    A('  s_mov_b32 s8, s4'); A('  s_mov_b32 s9, s5'); A('  s_mov_b32 s10, 0x10000000'); A('  s_mov_b32 s11, 0x20000')
    A('  s_mov_b32 s39, 0')
    if xr: A(f'  s_bfe_u32 s60, s2, {(1<<16)|xr[1]:#x}'); A(f'  s_lshl_b32 s60, s60, {xr[0]}')
    if infl2: A('  s_getreg_b32 s50, hwreg(HW_REG_XCC_ID)'); A('  s_and_b32 s50, s50, 1')
    if orc: A(f'  s_mov_b32 s56, {orc[0]*256}'); A('  s_mov_b32 s50, 1'); A('  s_mov_b32 s58, s40')
    A('L_loop:')
    scatter('s35', 's39', tbits[3:])
    for u in range(8):
        for h in range(2):
            i = 2*u + h
            tb4 = list(tbits[:3]); tb4.insert(hp, 8)
            o = sum(((i >> k) & 1) << tb4[k] for k in range(4))
            A(f'  s_add_u32 s36, s35, {o}')
            if xr: A('  s_xor_b32 s36, s36, s60')
            if orc:
                if i % 4 == 0: A('  s_memrealtime s[58:59]')
                if i % 4 == 1:
                    A('  s_waitcnt lgkmcnt(0)'); A('  s_sub_u32 s57, s58, s40'); A('  s_lshl_b32 s57, s57, 8')
                    A('  s_cmp_gt_u32 s57, s56'); A('  s_cselect_b32 s50, 2, 1')
                    if orc[2]: A(f'  s_add_u32 s57, s57, {orc[2]*256}'); A('  s_cmp_lt_u32 s57, s56'); A('  s_cselect_b32 s50, 0, s50')
                    A(f'  s_add_u32 s56, s56, {orc[1]}')
                A(f'  s_waitcnt vmcnt({infl})'); A('  s_cmp_eq_u32 s50, 2'); A(f'  s_cbranch_scc1 L_go{i}')
                A(f'  s_waitcnt vmcnt({infl-1})'); A('  s_cmp_eq_u32 s50, 1'); A(f'  s_cbranch_scc1 L_go{i}')
                A(f'  s_waitcnt vmcnt({infl-2})')
            if infl2 and i in infl2:
                A(f'  s_waitcnt vmcnt({infl})'); A('  s_cmp_eq_u32 s50, 0'); A(f'  s_cbranch_scc1 L_go{i}')
            A(f'  s_waitcnt vmcnt({infl-1})')
            A(f'L_go{i}:')
            A(f'  buffer_load_dwordx4 v[{8+4*i}:{8+4*i+3}], v1, s[8:11], s36 offen nt')
    if touch:
        A(f'  s_cmp_eq_u32 s39, {touch}'); A('  s_cbranch_scc0 L_nt')
        A('  s_mov_b32 s12, s6'); A('  s_mov_b32 s13, s7'); A('  s_mov_b32 s14, 0x10000000'); A('  s_mov_b32 s15, 0x20000')
        A('  s_cmp_eq_u32 s3, 0'); A('  s_cbranch_scc0 L_nt')
        A('  buffer_load_dword v100, off, s[12:15], s30 nt')
        A('L_nt:')
    if early:
        for k, b in enumerate((0, 1, 2, 4, 8)):
            A(f'  s_cmp_eq_u32 s39, {b}'); A(f'  s_cbranch_scc0 L_e{k}'); A(f'  s_memrealtime s[{52+2*k}:{53+2*k}]'); A(f'L_e{k}:')
    A('  s_add_u32 s39, s39, 1')
    A(f'  s_cmp_eq_u32 s39, 16'); A('  s_cbranch_scc0 L_nsw')
    A('  s_mov_b32 s8, s6'); A('  s_mov_b32 s9, s7'); A('  s_memrealtime s[42:43]')
    A('L_nsw:')
    A(f'  s_cmp_lt_u32 s39, 32'); A('  s_cbranch_scc1 L_loop')
    A('  s_waitcnt vmcnt(0)')
    A('  s_barrier')
    A('  s_memrealtime s[44:45]')
    A('  s_waitcnt lgkmcnt(0)')
    A('  s_add_u32 s16, s22, 0x20000000'); A('  s_addc_u32 s17, s23, 0'); A('  s_mov_b32 s18, 0x100000'); A('  s_mov_b32 s19, 0x20000')
    A('  v_mov_b32 v4, s40'); A('  v_mov_b32 v5, s41'); A('  v_mov_b32 v6, s42'); A('  v_mov_b32 v7, s43')
    A('  s_lshl_b32 s36, s2, 6'); A('  v_mov_b32 v3, s36')
    A('  v_cmp_eq_u32 vcc, 0, v0'); A('  s_and_saveexec_b64 s[46:47], vcc'); A('  s_cbranch_execz L_end')
    A('  buffer_store_dwordx4 v[4:7], v3, s[16:19], 0 offen')
    A('  s_nop 1')
    A('  v_mov_b32 v8, s44'); A('  v_mov_b32 v9, s45')
    A('  buffer_store_dwordx2 v[8:9], v3, s[16:19], 0 offen offset:16')
    if early:
        for k in range(10): A(f'  v_mov_b32 v{12+k}, s{52+k}')
        A('  buffer_store_dwordx2 v[12:13], v3, s[16:19], 0 offen offset:24')
        A('  buffer_store_dwordx4 v[14:17], v3, s[16:19], 0 offen offset:32')
        A('  buffer_store_dwordx4 v[18:21], v3, s[16:19], 0 offen offset:48')
    A('  s_waitcnt vmcnt(0)')
    A('L_end:'); A('  s_endpgm')
    A('.section .rodata,"a"'); A('.p2align 6'); A(f'.amdhsa_kernel {NAME}_kernel')
    A(f'  .amdhsa_next_free_vgpr 136'); A('  .amdhsa_next_free_sgpr 64'); A(f'  .amdhsa_accum_offset 136')
    A('  .amdhsa_group_segment_fixed_size 0'); A('  .amdhsa_kernarg_size 104'); A('  .amdhsa_user_sgpr_count 2')
    A('  .amdhsa_user_sgpr_kernarg_segment_ptr 1'); A('  .amdhsa_system_sgpr_workgroup_id_x 1'); A('.end_amdhsa_kernel')
    open(path, 'w').write('\n'.join(L) + '\n')
if __name__ == '__main__':
    files = []
    def mk(w, t, g=None, **kw):
        if g is None: g = tuple(b for b in range(9,28) if b not in w and b not in t and b not in kw.get('r',(9,10)))
        name = 'p_w' + '.'.join(map(str,w)) + '_t' + '.'.join(map(str,t)) + '_g' + '.'.join(map(str,g[:3])) + ''.join(f'_{k}{str(v).replace(" ","").replace(",",".").replace("(","").replace(")","")}' for k,v in kw.items())
        gen('work/' + name + '.s', wbits=w, tbits=t, gbits=g, **kw); files.append('work/' + name + '.s')
    exec(sys.argv[1])
    print(' '.join(files))
```
